```python
import torch

def _softmax(x, axis=-1):
    return torch.softmax(x, dim=axis)
def _gelu(x):
    return torch.nn.functional.gelu(x, approximate="tanh")
def _silu(x):
    return torch.nn.functional.silu(x)
def _sigmoid(x):
    return torch.sigmoid(x)
def _layernorm(x, axis=-1, eps=1e-5):
    m = x.mean(dim=axis, keepdim=True)
    v = x.var(dim=axis, keepdim=True, unbiased=False)
    return (x - m) / torch.sqrt(v + eps)
def _scatter_add(tgt, idx, src, axis=0):
    return tgt.clone().index_add_(axis, idx, src)
def _segment_sum(src, seg, n):
    out = torch.zeros((n,) + src.shape[1:], dtype=src.dtype)
    return out.index_add_(0, seg, src)
def _pad(x, pw):
    flat = tuple(v for pair in reversed(pw) for v in pair)
    return torch.nn.functional.pad(x, flat)

kernel_name = 'concat_heads__sliding_local_dilated__compressed_kv_cla__prompt'

def setup_inputs():

    _w = (lambda a: (lambda t: t.to(torch.bfloat16) if t.is_floating_point() else t)(torch.as_tensor(a)))
    def _A_setup():
        B, S, D = 1, 2048, 512
        return {
            "x": _w((lambda *s: torch.randn(*s, dtype=torch.bfloat16) * 0.4)(B, S, D)),
            "wqkv": _w((lambda *s: torch.randn(*s, dtype=torch.bfloat16) * 0.4)(D, 3 * D)),
            "wo": _w((lambda *s: torch.randn(*s, dtype=torch.bfloat16) * 0.05)(D, D)),
        }
    _A_in = _A_setup()

    def _B_setup():
        B, H, Sq, Sk, D, M = 1, 32, 2048, 2048, 128, 512
        Dc = 4 * D
        return {
            "x": _w((lambda *s: torch.randn(*s, dtype=torch.bfloat16) * 0.2)(B, Sq, M)),
            "c_kv": _w((lambda *s: torch.randn(*s, dtype=torch.bfloat16) * 1.6)(B, Sk, Dc)),
            "w_q": _w((lambda *s: torch.randn(*s, dtype=torch.bfloat16) * 3.2)(M, H, D) * (M ** -0.5)),
            "w_uk": _w((lambda *s: torch.randn(*s, dtype=torch.bfloat16) * 3.2)(Dc, H, D) * (Dc ** -0.5)),
            "w_uv": _w((lambda *s: torch.randn(*s, dtype=torch.bfloat16) * 1.6)(Dc, H, D) * (Dc ** -0.5)),
            "w_o": _w((lambda *s: torch.randn(*s, dtype=torch.bfloat16) * 1.6)(H, D, M) * ((H * D) ** -0.5)),
        }
    _B_in = _B_setup()

    return {
        "A_x": _A_in["x"],
        "A_wqkv": _A_in["wqkv"],
        "A_wo": _A_in["wo"],
        "B_x": _B_in["x"],
        "B_c_kv": _B_in["c_kv"],
        "B_w_q": _B_in["w_q"],
        "B_w_uk": _B_in["w_uk"],
        "B_w_uv": _B_in["w_uv"],
        "B_w_o": _B_in["w_o"],
    }

def reference(A_x, A_wqkv, A_wo, B_x, B_c_kv, B_w_q, B_w_uk, B_w_uv, B_w_o):
    def _A_ref(x, wqkv, wo):
        B, S, D = x.shape
        H = 32; Dh = D // H
        W, dil = 8, 2
        qkv = (lambda x, *d: x.permute(*d))((x @ wqkv).reshape(B, S, 3, H, Dh), 2, 0, 3, 1, 4)
        q, k, v = qkv[0], qkv[1], qkv[2]
        scale = Dh ** -0.5
        pos = torch.arange(S)
        off = torch.arange(W) * dil
        idx = pos[:, None] - off[None, :]
        mask = idx >= 0
        idx_c = torch.where(mask, idx, 0).reshape(-1)
        kg = k[:, :, idx_c, :].reshape(B, H, S, W, Dh)
        vg = v[:, :, idx_c, :].reshape(B, H, S, W, Dh)
        logits = torch.einsum("bhsd,bhswd->bhsw", q, kg) * scale
        logits = torch.where(mask[None, None, :, :], logits, -1e9)
        attn = _softmax(logits, axis=-1)
        o = torch.einsum("bhsw,bhswd->bhsd", attn, vg)
        return (lambda x, *d: x.permute(*d))(o, 0, 2, 1, 3).reshape(B, S, D) @ wo

    def _B_ref(x, c_kv, w_q, w_uk, w_uv, w_o):
        B, Sq, M = x.shape[0], x.shape[1], x.shape[2]
        Sk = c_kv.shape[1]
        H, D = w_q.shape[1], w_q.shape[2]
        q = torch.einsum("bqm,mhd->bhqd", x, w_q)
        k = torch.einsum("bkc,chd->bhkd", c_kv, w_uk)
        v = torch.einsum("bkc,chd->bhkd", c_kv, w_uv)
        scores = torch.einsum("bhqd,bhkd->bhqk", q, k) * (D ** -0.5)
        off = Sk - Sq
        qi = torch.arange(Sq)[:, None]
        kj = torch.arange(Sk)[None, :]
        cmask = kj <= (qi + off)
        scores = torch.where(cmask[None, None], scores, -1e9)
        p = _softmax(scores, axis=-1)
        ctx = torch.einsum("bhqk,bhkd->bhqd", p, v)
        return torch.einsum("bhqd,hdm->bqm", ctx, w_o)

    a = _A_ref(A_x, A_wqkv, A_wo)
    b = _B_ref(B_x, B_c_kv, B_w_q, B_w_uk, B_w_uv, B_w_o)
    return torch.concatenate([a, b], axis=-1)
```

```python
import re

class Prog:
    def __init__(self):
        self.lines = []
    def e(self, s):
        self.lines.append(s)
    def ext(self, l):
        self.lines.extend(l)
    def label(self, n):
        self.lines.append(n + ":")
    def nop(self, n):
        while n > 0:
            k = min(n, 16)
            self.lines.append(f"s_nop {k-1}")
            n -= k
    def text(self):
        out = []
        for l in self.lines:
            if l.endswith(":") or l.startswith(".") or l.startswith(";"):
                out.append(l)
            else:
                out.append("    " + l)
        return "\n".join(out) + "\n"

def R(f, b, n=1):
    return f"{f}{b}" if n == 1 else f"{f}[{b}:{b+n-1}]"

class Reg:
    def __init__(self, f, b): self.f = f; self.b = b
    def r(self, off=0, n=1): return R(self.f, self.b + off, n)

def interleave(mf, fill):
    out = []
    for i, m in enumerate(mf):
        out.append(m)
        out.extend(fill[i])
    for extra in fill[len(mf):]:
        out.extend(extra)
    return out

def spread(fill, items, lo, hi):
    n = len(items)
    if n == 0: return
    span = hi - lo
    for i, it in enumerate(items):
        g = lo + (i * span) // n
        if isinstance(it, str): fill[g].append(it)
        else: fill[g].extend(it)

_reg_re = re.compile(r"\b([vas])(\d+)\b|\b([vas])\[(\d+):(\d+)\]")
def regs_of(op):
    s = set()
    for m in _reg_re.finditer(op):
        if m.group(1): s.add((m.group(1), int(m.group(2))))
        else:
            for i in range(int(m.group(4)), int(m.group(5)) + 1): s.add((m.group(3), i))
    for sp in ("vcc", "exec", "m0"):
        if re.search(r"\b" + sp + r"\b", op): s.add((sp, 0))
    return s

TRANS = ("v_exp_f32", "v_log_f32", "v_rcp_f32", "v_rsq_f32", "v_sqrt_f32")
def parse(line):
    line = line.split(";")[0].strip()
    if not line or line.endswith(":") or line.startswith("."): return None
    parts = line.split(None, 1)
    op = parts[0]
    ops = [x.strip() for x in parts[1].split(",")] if len(parts) > 1 else []
    d = dict(op=op, defs=set(), uses=set(), kind="other", text=line, ws=1)
    if op == "s_nop":
        d["ws"] = int(ops[0], 0) + 1; d["kind"] = "nop"; return d
    if op.startswith("v_mfma"):
        d["kind"] = "mfma"
        d["defs"] = regs_of(ops[0]); d["A"] = regs_of(ops[1]); d["B"] = regs_of(ops[2]); d["C"] = regs_of(ops[3].split()[0])
        d["uses"] = d["A"] | d["B"] | d["C"]
        d["passes"] = 8 if "32x32" in op else 4
        return d
    if op.startswith("ds_read") or op.startswith("ds_bpermute") :
        d["kind"] = "ds"; d["defs"] = regs_of(ops[0]); d["uses"] = set().union(*[regs_of(o.split()[0]) for o in ops[1:]]); return d
    if op.startswith("ds_write"):
        d["kind"] = "ds"; d["uses"] = set().union(*[regs_of(o.split()[0]) for o in ops]); return d
    if op.startswith("buffer_load") or op.startswith("global_load"):
        d["kind"] = "vmem"
        if line.rstrip().endswith(" lds") or " lds " in line:
            d["uses"] = set().union(*[regs_of(o.split()[0]) for o in ops]) | {("m0", 0)}; d["lds"] = True
        else:
            d["defs"] = regs_of(ops[0]); d["uses"] = set().union(*[regs_of(o.split()[0]) for o in ops[1:]])
        return d
    if op.startswith("buffer_store") or op.startswith("global_store"):
        d["kind"] = "vmem"; d["uses"] = set().union(*[regs_of(o.split()[0]) for o in ops])
        d["store"] = True
        d["wide"] = op.endswith("x4") or op.endswith("x3")
        d["data"] = regs_of(ops[0]) if op.startswith("buffer") else regs_of(ops[1])
        return d
    if op.startswith("v_"):
        d["kind"] = "valu"
        if op.startswith("v_cmp"):
            d["defs"] = regs_of(ops[0]); d["uses"] = set().union(*[regs_of(o) for o in ops[1:]])
        elif op.startswith("v_permlane") and "swap" in op:
            d["defs"] = regs_of(ops[0]) | regs_of(ops[1]); d["uses"] = set(d["defs"]); d["perm"] = True
        elif op.startswith("v_readfirstlane") or op.startswith("v_readlane"):
            d["defs"] = regs_of(ops[0]); d["uses"] = regs_of(ops[1]); d["rl"] = True
        else:
            d["defs"] = regs_of(ops[0]); d["uses"] = set().union(*[regs_of(o) for o in ops[1:]]) if len(ops) > 1 else set()
            if op.startswith("v_fmac") : d["uses"] |= d["defs"]
            if "dpp" in line or "row_" in line or "quad_perm" in line: d["dpp"] = True
        if op.split("_e")[0] in TRANS or op in TRANS: d["trans"] = True
        return d
    if op.startswith("s_"):
        d["kind"] = "salu"
        if op.startswith("s_cmp") or op.startswith("s_cbranch") or op.startswith("s_branch") or op in ("s_waitcnt", "s_barrier", "s_endpgm", "s_setprio"):
            d["uses"] = set().union(*[regs_of(o) for o in ops]) if ops and not op.startswith(("s_cbranch","s_branch","s_waitcnt")) else set()
        else:
            d["defs"] = regs_of(ops[0]); d["uses"] = set().union(*[regs_of(o) for o in ops[1:]]) if len(ops) > 1 else set()
        return d
    return d

def check_stream(ins, where=""):
    probs = []
    n = len(ins)
    for j in range(n):
        c = ins[j]
        if c["kind"] == "nop": continue
        dist = 0
        for i in range(j - 1, max(-1, j - 40), -1):
            p = ins[i]
            need = 0
            if p["kind"] == "valu":
                vd = {x for x in p["defs"] if x[0] in "va"}
                sd = {x for x in p["defs"] if x[0] in ("s", "vcc")}
                if c["kind"] == "mfma" and vd & c["uses"]: need = max(need, 2)
                if c.get("perm") and vd & c["uses"]: need = max(need, 2)
                if c.get("dpp") and vd & c["uses"]: need = max(need, 2)
                if c.get("rl") and vd & c["uses"]: need = max(need, 1)
                if p.get("trans") and c["kind"] == "valu" and not c.get("trans") and vd & c["uses"]: need = max(need, 1)
                if p.get("trans") and c["kind"] in ("vmem","ds") and vd & c["uses"]: need = max(need, 1)
                if c["kind"] == "vmem" and sd & c["uses"]: need = max(need, 5)
                if c["kind"] == "valu" and sd & c["uses"]: need = max(need, 2)
                if c["kind"] == "salu" and sd & c["uses"]: need = max(need, 1)
            if p["kind"] == "salu" and ("m0", 0) in p["defs"] and c.get("lds"): need = max(need, 1)
            if p["kind"] == "mfma":
                P = p["passes"]
                D = p["defs"]
                if c["kind"] == "mfma":
                    if D & c["C"]:
                        if D == c["C"] and c["passes"] == P: need = max(need, 0)
                        else: need = max(need, {4: 6, 8: 10}[P])
                    if D & (c["A"] | c["B"]): need = max(need, {4: 8, 8: 12}[P])
                    if (D & c["defs"]) and not (D & c["C"]): need = max(need, {4: 6, 8: 10}[P])
                else:
                    if D & (c["uses"] | c["defs"]): need = max(need, {4: 8, 8: 12}[P])
                if c["kind"] == "valu" and p["C"] & c["defs"]: need = max(need, {4: 3, 8: 7}[P])
                if c["kind"] in ("ds", "vmem") and p["C"] & c["defs"]: need = max(need, {4: 3, 8: 7}[P])
            if p.get("store") and p.get("wide") and (p["data"] & c["defs"]):
                need = max(need, 2 if c["kind"] == "valu" else 1)
            if need > dist:
                probs.append(f"{where}: need {need} have {dist}: [{p['text']}] -> [{c['text']}]")
            dist += p["ws"]
            if dist > 20: break
    return probs

def check_prog(lines, maxpaths=None):
    parsed = []
    labels = {}
    for l in lines:
        s = l.split(";")[0].strip()
        if s.endswith(":"):
            labels[s[:-1]] = len(parsed); continue
        p = parse(l)
        if p: parsed.append(p)
    probs = []
    seg = []
    for p in parsed:
        seg.append(p)
        if p["op"] in ("s_branch", "s_endpgm"):
            probs += check_stream(seg, "lin"); seg = []
    probs += check_stream(seg, "lin")
    for idx, p in enumerate(parsed):
        if p["op"].startswith("s_cbranch") or p["op"] == "s_branch":
            tgt = p["text"].split()[-1]
            if tgt in labels:
                t = labels[tgt]
                pre = parsed[max(0, idx - 30): idx + 1]
                post = []
                for q in parsed[t: t + 30]:
                    post.append(q)
                    if q["op"] in ("s_branch", "s_endpgm"): break
                pr = check_stream(pre + post, f"edge->{tgt}")
                probs += pr
    return sorted(set(probs))
```

```python
import sys, struct, math
from asmlib import *

NAME = "concat_heads__sliding_local_dilated__compressed_kv_cla__prompt"
KWS = 0
VWS = 16 << 20
CTX = 32 << 20
OA = 48 << 20
MF = "v_mfma_f32_16x16x32_bf16"

P_AX, P_WQKV, P_WO_A, P_BX, P_CKV, P_WQ, P_WUK, P_WUV, P_WO, P_OUT, P_DBG, P_WS = [4 + 2 * i for i in range(12)]

def header(p, name):
    p.e(".p2align 8")
    p.e(f".globl {name}")
    p.e(f".type {name},@function")
    p.label(name)

def descriptor(name, vgpr, acc_off, sgpr=96):
    return [".p2align 6", f".amdhsa_kernel {name}",
            f"  .amdhsa_next_free_vgpr {vgpr}", f"  .amdhsa_next_free_sgpr {sgpr}", f"  .amdhsa_accum_offset {acc_off}",
            "  .amdhsa_group_segment_fixed_size 0", "  .amdhsa_kernarg_size 96", "  .amdhsa_user_sgpr_count 2",
            "  .amdhsa_user_sgpr_kernarg_segment_ptr 1", "  .amdhsa_system_sgpr_workgroup_id_x 1",
            ".end_amdhsa_kernel"]

def common_prologue(p, endlabel, sWave, vLane, vTmp):
    p.e("s_cmp_ge_u32 s2, 256")
    p.e(f"s_cbranch_scc1 {endlabel}")
    p.e("s_load_dwordx16 s[4:19], s[0:1], 0")
    p.e("s_load_dwordx8 s[20:27], s[0:1], 64")
    p.e(f"v_lshrrev_b32 v{vTmp}, 6, v0")
    p.e(f"v_and_b32 v{vLane}, 63, v0")
    p.e(f"v_readfirstlane_b32 s{sWave}, v{vTmp}")

def srd(p, d, ptr, off, size):
    if off == 0:
        p.e(f"s_mov_b32 s{d}, s{ptr}"); p.e(f"s_mov_b32 s{d+1}, s{ptr+1}")
    else:
        p.e(f"s_add_u32 s{d}, s{ptr}, {off}"); p.e(f"s_addc_u32 s{d+1}, s{ptr+1}, 0")
    p.e(f"s_mov_b32 s{d+2}, {size}")
    p.e(f"s_mov_b32 s{d+3}, 0x20000")

STAMP_BASE = 64 << 20
def stamp(p, opt, i):
    if opt.get("stamp"):
        p.e(f"{'s_memtime' if opt.get('cyc') else 's_memrealtime'} s[{80+2*i}:{81+2*i}]")
def stamp_flush(p, opt, kidx, n, sWave):
    if not opt.get("stamp"): return
    p.e("s_waitcnt vmcnt(0) lgkmcnt(0)")
    stamp(p, opt, n)
    p.e("s_waitcnt lgkmcnt(0)")
    srd(p, 76, P_WS, STAMP_BASE + kidx * 65536, 65536)
    p.e(f"s_lshl_b32 s75, s2, 2"); p.e(f"s_add_u32 s75, s75, s{sWave}"); p.e("s_lshl_b32 s75, s75, 5")
    p.e("v_mov_b32 v0, s75")
    p.e("s_mov_b64 exec, 1")
    for i in range(n + 1):
        p.e(f"v_mov_b32 v1, s{80+2*i}")
        p.e(f"buffer_store_dword v1, v0, s[76:79], 0 offen offset:{4*i}")
    p.e("s_waitcnt vmcnt(0)")

def mfma(d, a, b, c):
    return f"{MF} {d}, {a}, {b}, {c}"

def gen_k1(p, opt):
    name = "k1_proj_kernel"
    header(p, name)
    sX, sW, sO = 28, 32, 36
    sWave, sH, sRB, sOffA, sOffW, sM0A, sM0W, sCnt, sT, sT2 = range(40, 50)
    vLane, vL16, vG, vI = 1, 2, 3, 4
    voffA = [8, 9, 10, 11]; voffW = [12, 13, 14, 15]
    xaddr = [16, 17]; waddr = list(range(18, 26))
    vT = 26
    PK = 32
    def acc(xb, wb):
        i = xb * 8 + wb
        return Reg("v", 64 + 4 * i) if i < 48 else Reg("a", 4 * (i - 48))
    def XF(st, xb): return Reg("a", 64 + st * 64 + xb * 4)
    def WF(st, wb): return Reg("a", 64 + st * 64 + 32 + wb * 4)

    stamp(p, opt, 0)
    common_prologue(p, "k1_end", sWave, vLane, vT)
    p.e(f"s_and_b32 s{sH}, s2, 7"); p.e(f"s_lshl_b32 s{sH}, s{sH}, 2")
    p.e(f"s_lshr_b32 s{sT}, s2, 3"); p.e(f"s_and_b32 s{sT}, s{sT}, 3"); p.e(f"s_add_u32 s{sH}, s{sH}, s{sT}")
    p.e(f"s_lshr_b32 s{sRB}, s2, 5")
    p.e(f"v_lshlrev_b32 v{vL16}, 4, v{vLane}")
    p.e(f"v_lshrrev_b32 v{vG}, 4, v{vLane}")
    p.e(f"v_and_b32 v{vI}, 15, v{vLane}")
    p.e(f"v_lshrrev_b32 v{vT}, 3, v{vLane}")
    p.e(f"v_and_b32 v{vT+1}, 7, v{vLane}")
    p.e(f"v_xor_b32 v{vT+1}, v{vT+1}, v{vT}")
    p.e(f"v_lshlrev_b32 v{vT+1}, 4, v{vT+1}")
    p.e(f"v_lshl_add_u32 v{voffA[0]}, v{vT}, 10, v{vT+1}")
    for i in range(1, 4): p.e(f"v_add_u32 v{voffA[i]}, {i*(8192-1024)}, v{voffA[0]}")
    p.e(f"v_lshrrev_b32 v{vT}, 1, v{vI}")
    p.e(f"v_xor_b32 v{vT}, v{vT}, v{vG}")
    p.e(f"v_and_b32 v{vT+1}, 1, v{vI}")
    p.e(f"v_lshl_add_u32 v{vT}, v{vT}, 1, v{vT+1}")
    p.e(f"v_lshlrev_b32 v{vT}, 4, v{vT}")
    p.e(f"v_lshl_add_u32 v{voffW[0]}, v{vG}, 13, v{vT}")
    p.e(f"v_add_u32 v{voffW[1]}, {32768-1024}, v{voffW[0]}")
    p.e(f"v_xor_b32 v{vT+2}, 128, v{voffW[0]}")
    p.e(f"v_add_u32 v{voffW[2]}, {2*(32768-1024)}, v{vT+2}")
    p.e(f"v_add_u32 v{voffW[3]}, {3*(32768-1024)}, v{vT+2}")
    p.e("s_waitcnt lgkmcnt(0)")
    if opt.get("st2"): stamp(p, opt, 1)
    p.e(f"s_lshl_b32 s{sT}, s{sRB}, 18")
    srd(p, sX, P_CKV, f"s{sT}", 262144)
    p.e(f"s_cmp_lt_u32 s{sWave}, 2")
    p.e(f"s_cselect_b32 s{sW}, s{P_WUK}, s{P_WUV}")
    p.e(f"s_cselect_b32 s{sW+1}, s{P_WUK+1}, s{P_WUV+1}")
    p.e(f"s_lshl_b32 s{sT}, s{sH}, 8")
    p.e(f"s_add_u32 s{sW}, s{sW}, s{sT}"); p.e(f"s_addc_u32 s{sW+1}, s{sW+1}, 0")
    p.e(f"s_sub_u32 s{sW+2}, {512*8192}, s{sT}")
    p.e(f"s_mov_b32 s{sW+3}, 0x20000")
    p.e(f"s_lshr_b32 s{sT}, s{sWave}, 1"); p.e(f"s_lshl_b32 s{sT}, s{sT}, 24")
    p.e(f"s_lshl_b32 s{sT2}, s{sH}, 19"); p.e(f"s_add_u32 s{sT}, s{sT}, s{sT2}")
    p.e(f"s_lshl_b32 s{sT2}, s{sRB}, 16"); p.e(f"s_add_u32 s{sT}, s{sT}, s{sT2}")
    p.e(f"s_and_b32 s{sT2}, s{sWave}, 1"); p.e(f"s_lshl_b32 s{sT2}, s{sT2}, 15"); p.e(f"s_add_u32 s{sT}, s{sT}, s{sT2}")
    srd(p, sO, P_WS, f"s{sT}", 32768)
    p.e(f"s_lshl_b32 s{sOffA}, s{sWave}, 16")
    p.e(f"s_lshl_b32 s{sM0A}, s{sWave}, 13")
    p.e(f"s_and_b32 s{sT}, s{sWave}, 1")
    p.e(f"s_lshl_b32 s{sOffW}, s{sT}, 18")
    p.e(f"s_add_u32 s{sM0W}, s{sM0A}, 32768")

    sXa, sWa, sOa = 52, 56, 60
    sAx, sAh, sAw, sAm = 96, 97, 98, 99
    voffWa = [5, 6]
    ASL = 34816
    def a_setup():
        p.e(f"s_and_b32 s{sT}, s2, 7"); p.e(f"s_lshl_b32 s{sT}, s{sT}, 7")
        p.e(f"s_sub_u32 s{sT2}, {512*3072}, s{sT}")
        srd(p, sWa, P_WQKV, f"s{sT}", f"s{sT2}")
        srd(p, sXa, P_AX, 0, 2097152)
        srd(p, sOa, P_WS, OA, 2 << 20)
        p.e(f"s_lshr_b32 s{sT}, s2, 3"); p.e(f"s_lshl_b32 s{sT}, s{sT}, 16")
        p.e(f"s_lshl_b32 s{sT2}, s{sWave}, 14"); p.e(f"s_add_u32 s{sAx}, s{sT}, s{sT2}")
        p.e(f"s_sub_u32 s{sAh}, s{sT}, 16384"); p.e(f"s_max_i32 s{sAh}, s{sAh}, 0")
        p.e(f"s_and_b32 s{sT2}, s{sWave}, 1"); p.e(f"s_lshl_b32 s{sT2}, s{sT2}, 13"); p.e(f"s_add_u32 s{sAh}, s{sAh}, s{sT2}")
        p.e(f"s_mul_i32 s{sAw}, s{sWave}, {16*3072}")
        p.e(f"s_lshl_b32 s{sAm}, s{sWave}, 11")
        p.e(f"v_lshrrev_b32 v{vT}, 3, v{vLane}")
        p.e(f"v_mul_u32_u24 v{vT}, 3072, v{vT}")
        p.e(f"v_bfe_u32 v{vT+1}, v{vLane}, 1, 2")
        p.e(f"v_and_b32 v{vT+2}, 1, v{vG}")
        p.e(f"v_xor_b32 v{vT+1}, v{vT+1}, v{vT+2}")
        p.e(f"v_and_b32 v{vT+2}, 1, v{vLane}")
        p.e(f"v_lshl_add_u32 v{vT+1}, v{vT+1}, 1, v{vT+2}")
        p.e(f"v_lshl_add_u32 v{voffWa[0]}, v{vT+1}, 4, v{vT}")
        p.e(f"v_xor_b32 v{vT+1}, 4, v{vT+1}")
        p.e(f"v_lshl_add_u32 v{voffWa[1]}, v{vT+1}, 4, v{vT}")
        p.e(f"v_add_u32 v{voffWa[1]}, {8*3072-1024}, v{voffWa[1]}")
    def a_dma(st):
        base = (st % 4) * ASL
        it = []
        it.append([f"s_add_u32 m0, s{sAm}, {base + 2048}", "s_nop 0",
                   f"buffer_load_dwordx4 v{voffA[0]}, s[{sXa}:{sXa+3}], s{sAx} offen lds"])
        it.append([f"buffer_load_dwordx4 v{voffA[1]}, s[{sXa}:{sXa+3}], s{sAx} offen offset:1024 lds"])
        it.append([f"s_lshr_b32 s{sT2}, s{sAm}, 1", f"s_and_b32 s{sT2}, s{sT2}, 1024", f"s_add_u32 m0, s{sT2}, {base}", f"s_add_u32 s{sAx}, s{sAx}, 128",
                   f"buffer_load_dwordx4 v{voffA[0]}, s[{sXa}:{sXa+3}], s{sAh} offen lds"])
        for m in range(3):
            it.append([f"s_add_u32 m0, s{sAm}, {base + 10240 + m*8192}", f"s_add_u32 s{sT2}, s{sAw}, {m*1024}",
                       f"buffer_load_dwordx4 v{voffWa[0]}, s[{sWa}:{sWa+3}], s{sT2} offen lds"])
            it.append([f"buffer_load_dwordx4 v{voffWa[1]}, s[{sWa}:{sWa+3}], s{sT2} offen offset:1024 lds"])
        it.append([f"s_add_u32 s{sAh}, s{sAh}, 128", f"s_add_u32 s{sAw}, s{sAw}, {64*3072}"])
        return it

    def dma_stage():
        it = []
        for j in range(2):
            pre = [f"s_add_u32 m0, s{sM0A}, {4096*j}", f"s_add_u32 s{sT}, s{sOffA}, {32768*j}"]
            for i in range(4):
                ld = f"buffer_load_dwordx4 v{voffA[i]}, s[{sX}:{sX+3}], s{sT} offen offset:{i*1024} lds"
                it.append(pre + [ld] if i == 0 else [ld])
        for j in range(2):
            pre = [f"s_add_u32 m0, s{sM0W}, {4096*j}", f"s_add_u32 s{sT}, s{sOffW}, {16*8192*j}"]
            for i in range(4):
                ld = f"buffer_load_dwordx4 v{voffW[i]}, s[{sW}:{sW+3}], s{sT} offen offset:{i*1024} lds"
                it.append(pre + [ld] if i == 0 else [ld])
        it.append([f"s_add_u32 s{sOffA}, s{sOffA}, 128", f"s_add_u32 s{sOffW}, s{sOffW}, {64*8192}"])
        it.append([f"s_xor_b32 s{sM0A}, s{sM0A}, 0x10000", f"s_xor_b32 s{sM0W}, s{sM0W}, 0x10000"])
        return it
    for _ in range(2):
        for g in dma_stage(): p.ext(g)
    if opt.get("st2"): stamp(p, opt, 2)
    p.e(f"s_and_b32 s{sT}, s{sWave}, 1"); p.e(f"s_lshl_b32 s{sT}, s{sT}, 14")
    p.e(f"v_and_b32 v{vT}, 7, v{vLane}")
    p.e(f"v_xor_b32 v{vT}, v{vT}, v{vG}")
    p.e(f"v_lshlrev_b32 v{vT}, 4, v{vT}")
    p.e(f"v_lshl_add_u32 v{vT}, v{vI}, 7, v{vT}")
    p.e(f"v_add_u32 v{xaddr[0]}, s{sT}, v{vT}")
    p.e(f"v_xor_b32 v{xaddr[1]}, 64, v{xaddr[0]}")
    p.e(f"s_lshr_b32 s{sT}, s{sWave}, 1"); p.e(f"s_lshl_b32 s{sT}, s{sT}, 14"); p.e(f"s_add_u32 s{sT}, s{sT}, 32768")
    p.e(f"v_lshrrev_b32 v{vT}, 2, v{vI}")
    p.e(f"v_lshl_add_u32 v{vT+1}, v{vG}, 3, v{vT}")
    p.e(f"v_lshlrev_b32 v{vT+1}, 8, v{vT+1}")
    p.e(f"v_and_b32 v{vT+2}, 1, v{vG}")
    p.e(f"v_lshl_add_u32 v{vT}, v{vT+2}, 2, v{vT}")
    p.e(f"v_lshl_add_u32 v{vT+1}, v{vT}, 5, v{vT+1}")
    p.e(f"v_and_b32 v{vT+2}, 3, v{vI}")
    p.e(f"v_lshl_add_u32 v{vT+1}, v{vT+2}, 3, v{vT+1}")
    p.e(f"v_add_u32 v{waddr[0]}, s{sT}, v{vT+1}")
    for cb in range(1, 8): p.e(f"v_xor_b32 v{waddr[cb]}, {cb*32}, v{waddr[0]}")
    a_setup()
    for i in range(64, 256): p.e(f"v_mov_b32 v{i}, 0")
    for i in range(64): p.e(f"v_accvgpr_write_b32 a{i}, 0")

    def reads(st, kh):
        it = []
        for b in range(8):
            it.append(f"ds_read_b128 {XF(st,b).r(0,4)}, v{xaddr[kh]} offset:{b*2048}")
            it.append(f"ds_read_b64_tr_b16 {WF(st,b).r(0,2)}, v{waddr[b]} offset:{kh*8192}")
            it.append(f"ds_read_b64_tr_b16 {WF(st,b).r(2,2)}, v{waddr[b]} offset:{kh*8192+1024}")
        return it
    toggles = [f"v_xor_b32 v{r}, 0x10000, v{r}" for r in xaddr + waddr]

    if opt.get("st2"): stamp(p, opt, 3)
    p.e("s_waitcnt vmcnt(16)")
    p.e("s_barrier")
    stamp(p, opt, 4 if opt.get("st2") else 1)
    p.ext(reads(0, 0))
    p.e(f"s_cmp_ge_u32 s{sWave}, 2")
    p.e("s_cbranch_scc1 k1_vpath")

    def mm(st, vtype):
        out = []
        for xb in range(8):
            for wb in range(8):
                d = acc(xb, wb).r(0, 4)
                x, w = XF(st, xb).r(0, 4), WF(st, wb).r(0, 4)
                out.append(mfma(d, x, w, d) if vtype else mfma(d, w, x, d))
        return out

    def stage(vtype, dma, last):
        fill = [[] for _ in range(64)]
        spread(fill, reads(1, 1), 0, 48)
        spread(fill, toggles, 50, 62)
        p.e("s_waitcnt lgkmcnt(0)")
        p.ext(interleave(mm(0, vtype), fill))
        fill = [[] for _ in range(64)]
        if not last:
            p.e("s_waitcnt vmcnt(0) lgkmcnt(0)")
            p.e("s_barrier")
            rd = reads(0, 0)
            for i, r in enumerate(rd): fill[2 * i + 1 if i < 24 else 0].append(r)
            if dma: spread(fill, dma_stage(), 0, 56)
            else: spread(fill, a_dma(0), 0, 56)
        else:
            p.e("s_waitcnt lgkmcnt(0)")
            p.e("s_barrier")
            spread(fill, a_dma(1) + a_dma(2) + a_dma(3), 0, 64)
        p.ext(interleave(mm(1, vtype), fill))

    def epilogue(vtype):
        p.nop(8)
        p.e(f"s_mov_b32 s{sT}, 0")
        k = 0
        for f in range(32):
            if vtype: kp, db = f // 8, f % 8; b0, b1 = acc(2 * kp, db), acc(2 * kp + 1, db)
            else: kb, t = f // 4, f % 4; b0, b1 = acc(kb, 2 * t), acc(kb, 2 * t + 1)
            dst = PK + (k % 4) * 4; k += 1
            if b0.f == "a":
                tmp = PK + 16 + (k % 2) * 8
                for r in range(4): p.e(f"v_accvgpr_read_b32 v{tmp+r}, {b0.r(r)}")
                for r in range(4): p.e(f"v_accvgpr_read_b32 v{tmp+4+r}, {b1.r(r)}")
                b0, b1 = Reg("v", tmp), Reg("v", tmp + 4)
            p.e(f"v_cvt_pk_bf16_f32 v{dst}, {b0.r(0)}, {b0.r(1)}")
            p.e(f"v_cvt_pk_bf16_f32 v{dst+1}, {b0.r(2)}, {b0.r(3)}")
            p.e(f"v_cvt_pk_bf16_f32 v{dst+2}, {b1.r(0)}, {b1.r(1)}")
            p.e(f"v_cvt_pk_bf16_f32 v{dst+3}, {b1.r(2)}, {b1.r(3)}")
            p.e(f"buffer_store_dwordx4 v[{dst}:{dst+3}], v{vL16}, s[{sO}:{sO+3}], s{sT} offen offset:{(f%4)*1024}{opt.get('kvst','')}")
            if f % 4 == 3: p.e(f"s_add_u32 s{sT}, s{sT}, 4096")

    for vtype in (0, 1):
        tag = "v" if vtype else "k"
        if vtype: p.label("k1_vpath")
        p.e(f"s_mov_b32 s{sCnt}, 6")
        p.e(".p2align 5")
        p.label(f"k1_loop_{tag}")
        stage(vtype, True, False)
        p.e(f"s_sub_u32 s{sCnt}, s{sCnt}, 1")
        p.e(f"s_cmp_lg_u32 s{sCnt}, 0")
        p.e(f"s_cbranch_scc1 k1_loop_{tag}")
        stage(vtype, False, False)
        stage(vtype, False, True)
        stamp(p, opt, 5 if opt.get("st2") else 2)
        epilogue(vtype)
        if not vtype: p.e("s_branch k1_join")
    p.label("k1_join")
    stamp(p, opt, 6 if opt.get("st2") else 3)
    ax = [[16, 17], [18, 19]]; aw = [20, 21]
    p.e(f"v_and_b32 v{vT}, 7, v{vLane}")
    p.e(f"v_xor_b32 v{vT}, v{vT}, v{vG}")
    p.e(f"v_lshlrev_b32 v{vT}, 4, v{vT}")
    p.e(f"v_lshl_add_u32 v{ax[0][0]}, v{vI}, 7, v{vT}")
    p.e(f"v_xor_b32 v{ax[0][1]}, 64, v{ax[0][0]}")
    p.e(f"v_add_u32 v{ax[1][0]}, {2*ASL}, v{ax[0][0]}")
    p.e(f"v_add_u32 v{ax[1][1]}, {2*ASL}, v{ax[0][1]}")
    p.e(f"v_lshrrev_b32 v{vT}, 2, v{vI}")
    p.e(f"v_lshl_add_u32 v{vT}, v{vG}, 3, v{vT}")
    p.e(f"v_lshlrev_b32 v{vT}, 7, v{vT}")
    p.e(f"v_and_b32 v{vT+1}, 1, v{vG}")
    p.e(f"v_lshrrev_b32 v{vT+2}, 3, v{vI}")
    p.e(f"v_lshl_add_u32 v{vT+1}, v{vT+1}, 1, v{vT+2}")
    p.e(f"v_xor_b32 v{vT+1}, s{sWave}, v{vT+1}")
    p.e(f"v_lshl_add_u32 v{vT}, v{vT+1}, 5, v{vT}")
    p.e(f"v_and_b32 v{vT+1}, 3, v{vI}")
    p.e(f"v_lshl_add_u32 v{vT}, v{vT+1}, 3, v{vT}")
    p.e(f"v_add_u32 v{aw[0]}, 10240, v{vT}")
    p.e(f"v_add_u32 v{aw[1]}, {10240 + 2*ASL}, v{vT}")
    AX = lambda st, xb: Reg("a", 64 + st * 32 + xb * 4)
    AW = lambda st, m: Reg("a", 64 + st * 32 + 20 + m * 4)
    aq = lambda xb: 64 + (xb - 1) * 4
    ak = lambda xb: 80 + xb * 4
    av = lambda xb: 100 + xb * 4
    v4 = lambda b: f"v[{b}:{b+3}]"
    def areads(step):
        s_, kh = step // 2, step % 2
        sl = s_ % 4; hi = sl >> 1; off = (sl & 1) * ASL; st = step % 2
        it = []
        for m in range(3):
            for jh in range(2):
                it.append(f"ds_read_b64_tr_b16 {AW(st,m).r(2*jh,2)}, v{aw[hi]} offset:{off + m*8192 + kh*4096 + jh*512}")
        for xb in range(5):
            it.append(f"ds_read_b128 {AX(st,xb).r(0,4)}, v{ax[hi][kh]} offset:{off + xb*2048}")
        return it
    def amm(step):
        st = step % 2
        out = []
        c = lambda b: "0" if step == 0 else v4(b)
        for xb in range(5):
            if xb: out.append(mfma(v4(aq(xb)), AW(st, 0).r(0, 4), AX(st, xb).r(0, 4), c(aq(xb))))
            out.append(mfma(v4(ak(xb)), AW(st, 1).r(0, 4), AX(st, xb).r(0, 4), c(ak(xb))))
            out.append(mfma(v4(av(xb)), AX(st, xb).r(0, 4), AW(st, 2).r(0, 4), c(av(xb))))
        return out
    sOwn, sPrev, sPrev1 = 64, 72, 28
    p.e(f"v_lshlrev_b32 v{vT}, 2, v{vG}")
    p.e(f"v_sub_u32 v{vT}, v{vI}, v{vT}")
    for r in range(4):
        p.e(f"v_subrev_u32 v{vT+1}, {r}, v{vT}")
        p.e(f"v_and_b32 v{vT+2}, 0x80000001, v{vT+1}")
        p.e(f"v_cmp_eq_u32 s[{sOwn+2*r}:{sOwn+2*r+1}], 0, v{vT+2}")
        p.e(f"v_cmp_eq_u32 s[{sPrev+2*r}:{sPrev+2*r+1}], s{sT}, v{vT+2}" if False else f"v_xor_b32 v{vT+2}, 0x80000000, v{vT+2}")
        p.e(f"v_cmp_eq_u32 s[{sPrev+2*r}:{sPrev+2*r+1}], 0, v{vT+2}")
    p.e("s_waitcnt vmcnt(59)")
    p.e("s_barrier")
    p.ext(areads(0))
    p.e(f"s_lshr_b32 s{sT}, s2, 3"); p.e(f"s_cmp_eq_u32 s{sT}, 0")
    for r in range(4): p.e(f"s_cselect_b64 s[{sPrev1+2*r}:{sPrev1+2*r+1}], 0, s[{sPrev+2*r}:{sPrev+2*r+1}]")
    avm = [50, 50, 50, 18, 18, 9, 0]
    for s_ in range(8):
        p.e("s_waitcnt lgkmcnt(0)")
        fill = [[] for _ in range(14)]
        spread(fill, areads(2 * s_ + 1), 0, 11)
        p.ext(interleave(amm(2 * s_), fill))
        fill = [[] for _ in range(14)]
        if s_ < 7:
            p.e(f"s_waitcnt vmcnt({avm[s_]}) lgkmcnt(0)")
            p.e("s_barrier")
            spread(fill, areads(2 * s_ + 2), 0, 11)
            if s_ + 4 < 8: spread(fill, a_dma(s_ + 4), 0, 14)
        else:
            p.e("s_waitcnt lgkmcnt(0)")
        p.ext(interleave(amm(2 * s_ + 1), fill))
    if not opt.get("st2"): stamp(p, opt, 4)
    QF, KFa, VFa = 120, 128, 138
    SP = 148
    TM = 180
    PP = 196
    OO = 212
    vNEG = 22
    p.e(f"v_mov_b32 v{vNEG}, 0xff800000")
    p.e(f"s_mov_b32 s{sT}, {struct.unpack('<I', struct.pack('<f', 0.25*math.log2(math.e)))[0]:#x}")
    p.e(f"s_mov_b32 s{sT2}, 0xffff0000")
    p.nop(5)
    for xb in range(5):
        p.e(f"v_cvt_pk_bf16_f32 v{KFa+2*xb}, v{ak(xb)}, v{ak(xb)+1}"); p.e(f"v_cvt_pk_bf16_f32 v{KFa+2*xb+1}, v{ak(xb)+2}, v{ak(xb)+3}")
        if xb:
            p.e(f"v_cvt_pk_bf16_f32 v{QF+2*(xb-1)}, v{aq(xb)}, v{aq(xb)+1}"); p.e(f"v_cvt_pk_bf16_f32 v{QF+2*(xb-1)+1}, v{aq(xb)+2}, v{aq(xb)+3}")
    for xb in range(5):
        p.e(f"v_cvt_pk_bf16_f32 v{VFa+2*xb}, v{av(xb)}, v{av(xb)+1}"); p.e(f"v_cvt_pk_bf16_f32 v{VFa+2*xb+1}, v{av(xb)+2}, v{av(xb)+3}")
    B = range(4)
    for b in B:
        for o in range(2):
            kx = b + o
            p.e(f"v_mfma_f32_16x16x16_bf16 {v4(SP+8*b+4*o)}, v[{KFa+2*kx}:{KFa+2*kx+1}], v[{QF+2*b}:{QF+2*b+1}], 0")
    p.nop(6)
    for b in B:
        for r in range(0, 8, 2):
            x = SP + 8 * b + r
            p.e(f"v_cvt_pk_bf16_f32 v{x+1}, v{x}, v{x+1}")
        for r in range(0, 8, 2):
            x = SP + 8 * b + r
            p.e(f"v_lshlrev_b32 v{x}, 16, v{x+1}")
            p.e(f"v_and_b32 v{x+1}, s{sT2}, v{x+1}")
        for r in range(8):
            x = SP + 8 * b + r
            mk = (sPrev1 if b == 0 else sPrev) + 2 * r if r < 4 else sOwn + 2 * (r - 4)
            p.e(f"v_cndmask_b32 v{x}, v{vNEG}, v{x}, s[{mk}:{mk+1}]")
    def xlane(reg, tmp, op):
        for sw in ("v_permlane16_swap_b32", "v_permlane32_swap_b32"):
            for b in B: p.e(f"v_mov_b32 v{tmp+b}, v{reg+b}")
            p.e("s_nop 0")
            for b in B: p.e(f"{sw} v{reg+b}, v{tmp+b}")
            for b in B: p.e(f"{op} v{reg+b}, v{reg+b}, v{tmp+b}")
    for b in B:
        x = SP + 8 * b
        p.e(f"v_max3_f32 v{TM+b}, v{x}, v{x+1}, v{x+2}")
        p.e(f"v_max3_f32 v{TM+4+b}, v{x+3}, v{x+4}, v{x+5}")
        p.e(f"v_max3_f32 v{TM+b}, v{TM+b}, v{x+6}, v{x+7}")
        p.e(f"v_max_f32 v{TM+b}, v{TM+b}, v{TM+4+b}")
    xlane(TM, TM + 4, "v_max_f32")
    for b in B: p.e(f"v_mul_f32 v{TM+b}, s{sT}, v{TM+b}")
    for b in B:
        for r in range(8):
            x = SP + 8 * b + r
            p.e(f"v_fma_f32 v{x}, v{x}, s{sT}, -v{TM+b}")
    for b in B:
        for r in range(8):
            x = SP + 8 * b + r
            p.e(f"v_exp_f32 v{x}, v{x}")
    for b in B:
        x = SP + 8 * b
        p.e(f"v_add_f32 v{TM+b}, v{x}, v{x+1}")
        p.e(f"v_add_f32 v{TM+4+b}, v{x+2}, v{x+3}")
        p.e(f"v_add_f32 v{TM+8+b}, v{x+4}, v{x+5}")
        p.e(f"v_add_f32 v{TM+12+b}, v{x+6}, v{x+7}")
    for b in B:
        p.e(f"v_add_f32 v{TM+b}, v{TM+b}, v{TM+4+b}")
        p.e(f"v_add_f32 v{TM+8+b}, v{TM+8+b}, v{TM+12+b}")
    for b in B: p.e(f"v_add_f32 v{TM+b}, v{TM+b}, v{TM+8+b}")
    xlane(TM, TM + 4, "v_add_f32")
    for b in B: p.e(f"v_rcp_f32 v{TM+b}, v{TM+b}")
    p.e("s_nop 0")
    for b in B:
        for r in range(8):
            x = SP + 8 * b + r
            p.e(f"v_mul_f32 v{x}, v{TM+b}, v{x}")
        for r in range(4):
            p.e(f"v_cvt_pk_bf16_f32 v{PP+4*b+r}, v{SP+8*b+2*r}, v{SP+8*b+2*r+1}")
    p.e("s_nop 1")
    for b in B:
        p.e(mfma(v4(OO + 4 * b), v4(VFa + 2 * b), v4(PP + 4 * b), "0"))
    p.e(f"s_lshr_b32 s{sT}, s2, 3"); p.e(f"s_lshl_b32 s{sT}, s{sT}, 16")
    p.e(f"s_and_b32 s{sT2}, s2, 7"); p.e(f"s_lshl_b32 s{sT2}, s{sT2}, 11"); p.e(f"s_add_u32 s{sT}, s{sT}, s{sT2}")
    p.e(f"s_lshl_b32 s{sT2}, s{sWave}, 9"); p.e(f"s_add_u32 s{sT}, s{sT}, s{sT2}")
    p.e(f"v_lshlrev_b32 v{vT}, 3, v{vLane}")
    p.nop(2)
    for b in B:
        o = OO + 4 * b
        p.e(f"v_cvt_pk_bf16_f32 v{o}, v{o}, v{o+1}"); p.e(f"v_cvt_pk_bf16_f32 v{o+1}, v{o+2}, v{o+3}")
        p.e(f"buffer_store_dwordx2 v[{o}:{o+1}], v{vT}, s[{sOa}:{sOa+3}], s{sT} offen")
        p.e(f"s_add_u32 s{sT}, s{sT}, 16384")
    if not opt.get("st2"): stamp(p, opt, 5)
    stamp_flush(p, opt, 0, 7 if opt.get("st2") else 6, sWave)
    p.label("k1_end")
    p.e("s_endpgm")
    return descriptor(name, 448, 256, 102)

def pack_gaps(n, items, cap=8):
    fill = [[] for _ in range(n)]
    load = [0] * n
    for ins, cost, lo, hi in items:
        lo = max(0, lo); hi = min(n - 1, hi)
        best = None
        for g in range(lo, hi + 1):
            if load[g] + cost <= cap: best = g; break
        if best is None:
            best = min(range(lo, hi + 1), key=lambda g: (load[g], g))
        fill[best].extend(ins if isinstance(ins, list) else [ins])
        load[best] += cost
    return fill

QSCALE = 0x3e0293ee
import struct, math
QSCALE = struct.unpack("<I", struct.pack("<f", math.log2(math.e) / math.sqrt(128.0)))[0]

def gen_k2(p, opt):
    name = "k2_attn_kernel"
    header(p, name)
    sX, sW, sK, sV, sC = 28, 32, 36, 40, 44
    sWave, sH, sP, sT, sT2, sCnt, sStep, sEvS = range(48, 56)
    sTri = 56
    sM = 64
    sOffXb, sOffXs, sOffWq, sSlot = 72, 73, 74, 75
    sKoff, sKslot, sVoff, sVslot, sKr, sVr, sKw, sVw = 72, 73, 74, 3, 96, 97, 98, 99
    sEvB = 100; sDelta = 101
    KB, VB = 98304, 0
    vLane, vL16, vG, vI = 1, 2, 3, 4
    voffA = [5, 6, 7, 8]; voffW = [9, 10, 11, 12]
    xaddr = [13, 14]; waddr = list(range(15, 23))
    vT = 23
    vKa, vVa = 5, 6
    vNegm = [7, 8, 9, 10]; vNEG = 11
    ONES = 28
    def S(st, blk): return 32 + 32 * st + 4 * blk
    def P(st, f): return 96 + 16 * st + 4 * f
    def Cb(kb, qb): return 128 + (kb * 2 + qb) * 4
    def Cs(kb, qb): return 160 + (kb * 2 + qb) * 4
    def Q(qb, t): return Reg("v", 176 + qb * 16 + t * 4)
    def O(qb, db): return Reg("a", qb * 32 + db * 4)
    def L(qb): return Reg("a", 192 + 4 * qb)
    def F(i):
        if i < 16: return Reg("a", 128 + 4 * i)
        if i < 28: return Reg("a", 208 + 4 * (i - 16))
        return Reg("v", 240 + 4 * (i - 28))
    KF = lambda i: F(i)
    VF = lambda i: F(16 + i)
    v4 = lambda b: f"v[{b}:{b+3}]"

    stamp(p, opt, 0)
    common_prologue(p, "k2_end", sWave, vLane, vT)
    p.e(f"s_and_b32 s{sH}, s2, 7"); p.e(f"s_lshl_b32 s{sH}, s{sH}, 2")
    p.e(f"s_lshr_b32 s{sT}, s2, 3"); p.e(f"s_and_b32 s{sT}, s{sT}, 3"); p.e(f"s_add_u32 s{sH}, s{sH}, s{sT}")
    p.e(f"s_lshr_b32 s{sP}, s2, 5")
    p.e(f"v_lshlrev_b32 v{vL16}, 4, v{vLane}")
    p.e(f"v_lshrrev_b32 v{vG}, 4, v{vLane}")
    p.e(f"v_and_b32 v{vI}, 15, v{vLane}")
    p.e(f"v_lshrrev_b32 v{vT}, 3, v{vLane}")
    p.e(f"v_and_b32 v{vT+1}, 7, v{vLane}")
    p.e(f"v_xor_b32 v{vT+1}, v{vT+1}, v{vT}")
    p.e(f"v_lshlrev_b32 v{vT+1}, 4, v{vT+1}")
    p.e(f"v_lshl_add_u32 v{voffA[0]}, v{vT}, 10, v{vT+1}")
    for i in range(1, 4): p.e(f"v_add_u32 v{voffA[i]}, {i*(8192-1024)}, v{voffA[0]}")
    p.e(f"v_lshrrev_b32 v{vT}, 1, v{vI}")
    p.e(f"v_xor_b32 v{vT}, v{vT}, v{vG}")
    p.e(f"v_and_b32 v{vT+1}, 1, v{vI}")
    p.e(f"v_lshl_add_u32 v{vT}, v{vT}, 1, v{vT+1}")
    p.e(f"v_lshlrev_b32 v{vT}, 4, v{vT}")
    p.e(f"v_lshl_add_u32 v{voffW[0]}, v{vG}, 13, v{vT}")
    p.e(f"v_add_u32 v{voffW[1]}, {32768-1024}, v{voffW[0]}")
    p.e(f"v_xor_b32 v{vT+2}, 128, v{voffW[0]}")
    p.e(f"v_add_u32 v{voffW[2]}, {2*(32768-1024)}, v{vT+2}")
    p.e(f"v_add_u32 v{voffW[3]}, {3*(32768-1024)}, v{vT+2}")
    p.e("s_waitcnt lgkmcnt(0)")
    srd(p, sX, P_BX, 0, 2097152)
    p.e(f"s_lshl_b32 s{sT}, s{sH}, 8")
    p.e(f"s_sub_u32 s{sT2}, {512*8192}, s{sT}")
    srd(p, sW, P_WQ, f"s{sT}", f"s{sT2}")
    p.e(f"s_lshl_b32 s{sT}, s{sWave}, 15")
    p.e(f"s_lshl_b32 s{sT2}, s{sP}, 17")
    p.e(f"s_add_u32 s{sOffXs}, s{sT}, s{sT2}")
    p.e(f"s_sub_u32 s{sOffXb}, {15 << 17}, s{sT2}"); p.e(f"s_add_u32 s{sOffXb}, s{sOffXb}, s{sT}")
    p.e(f"s_lshl_b32 s{sOffWq}, s{sWave}, 17")
    p.e(f"s_lshl_b32 s{sKw}, s{sWave}, 13")
    p.e(f"s_lshl_b32 s{sVw}, s{sWave}, 12"); p.e(f"s_add_u32 s{sVw}, s{sVw}, 32768")
    p.e(f"s_mov_b32 s{sSlot}, 0")
    def q_dma():
        it = []
        for j, so in enumerate((sOffXb, sOffXs)):
            pre = [f"s_add_u32 m0, s{sKw}, s{sSlot}"] if j == 0 else ["s_add_u32 m0, m0, 4096"]
            for i in range(4):
                ld = f"buffer_load_dwordx4 v{voffA[i]}, s[{sX}:{sX+3}], s{so} offen offset:{i*1024} lds"
                it.append(pre + ["s_nop 0", ld] if i == 0 else [ld])
        pre = [f"s_add_u32 m0, s{sVw}, s{sSlot}", "s_nop 0"]
        for i in range(4):
            ld = f"buffer_load_dwordx4 v{voffW[i]}, s[{sW}:{sW+3}], s{sOffWq} offen offset:{i*1024} lds"
            it.append(pre + [ld] if i == 0 else [ld])
        it.append([f"s_add_u32 s{sOffXb}, s{sOffXb}, 128", f"s_add_u32 s{sOffXs}, s{sOffXs}, 128"])
        it.append([f"s_add_u32 s{sOffWq}, s{sOffWq}, {64*8192}", f"s_add_u32 s{sSlot}, s{sSlot}, 49152"])
        it.append([f"s_cmp_eq_u32 s{sSlot}, {3*49152}", f"s_cselect_b32 s{sSlot}, 0, s{sSlot}"])
        return it
    zero = [f"v_mov_b32 v{i}, 0" for i in range(32, 160)]
    k = 0
    for _ in range(3):
        for g in q_dma():
            p.ext(g)
            p.ext(zero[k:k + 3]); k += 3
    p.ext(zero[k:])
    p.e(f"v_and_b32 v{vT}, 7, v{vLane}")
    p.e(f"v_xor_b32 v{vT}, v{vT}, v{vG}")
    p.e(f"v_lshlrev_b32 v{vT}, 4, v{vT}")
    p.e(f"v_lshl_add_u32 v{vT}, v{vI}, 7, v{vT}")
    p.e(f"v_add_u32 v{xaddr[0]}, s{sKw}, v{vT}")
    p.e(f"v_xor_b32 v{xaddr[1]}, 64, v{xaddr[0]}")
    p.e(f"v_lshrrev_b32 v{vT}, 2, v{vI}")
    p.e(f"v_lshl_add_u32 v{vT+1}, v{vG}, 3, v{vT}")
    p.e(f"v_lshlrev_b32 v{vT+1}, 8, v{vT+1}")
    p.e(f"v_and_b32 v{vT+2}, 1, v{vG}")
    p.e(f"v_lshl_add_u32 v{vT}, v{vT+2}, 2, v{vT}")
    p.e(f"v_lshl_add_u32 v{vT+1}, v{vT}, 5, v{vT+1}")
    p.e(f"v_and_b32 v{vT+2}, 3, v{vI}")
    p.e(f"v_lshl_add_u32 v{vT+1}, v{vT+2}, 3, v{vT+1}")
    p.e(f"v_add_u32 v{waddr[0]}, 0x8000, v{vT+1}")
    for cb in range(1, 8): p.e(f"v_xor_b32 v{waddr[cb]}, {cb*32}, v{waddr[0]}")
    p.e(f"s_lshl_b32 s{sT}, s{sH}, 19")
    p.e(f"s_lshl_b32 s{sT2}, s{sP}, 15"); p.e(f"s_sub_u32 s{sT2}, {32*16384}, s{sT2}")
    srd(p, sK, P_WS, f"s{sT}", f"s{sT2}")
    p.e(f"s_add_u32 s{sT}, s{sT}, {VWS}")
    srd(p, sV, P_WS, f"s{sT}", f"s{sT2}")
    srd(p, sC, P_WS, CTX, 16 << 20)
    p.e(f"v_lshlrev_b32 v{vT}, 2, v{vG}")
    p.e(f"v_sub_u32 v{vT}, v{vI}, v{vT}")
    for r in range(4): p.e(f"v_cmp_le_i32 s[{sTri+2*r}:{sTri+2*r+1}], {r}, v{vT}")
    p.e(f"s_mov_b32 s{sDelta}, 49152")
    p.e(f"s_mov_b32 s{sEvB}, 49152")
    p.e(f"s_mov_b32 s{sStep}, 0")

    qacc = lambda xb, wb: Reg("v", 32 + (xb * 8 + wb) * 4)
    XF = lambda st, xb: Reg("a", st * 48 + xb * 4)
    WF = lambda st, wb: Reg("a", st * 48 + 16 + wb * 4)
    def qreads(st, kh):
        it = []
        for b in range(8):
            if b < 4: it.append(f"ds_read_b128 {XF(st,b).r(0,4)}, v{xaddr[kh]} offset:{b*2048}")
            it.append(f"ds_read_b64_tr_b16 {WF(st,b).r(0,2)}, v{waddr[b]} offset:{kh*8192}")
            it.append(f"ds_read_b64_tr_b16 {WF(st,b).r(2,2)}, v{waddr[b]} offset:{kh*8192+1024}")
        return it
    def qmm(st):
        return [mfma(qacc(xb, wb).r(0, 4), WF(st, wb).r(0, 4), XF(st, xb).r(0, 4), qacc(xb, wb).r(0, 4)) for xb in range(4) for wb in range(8)]
    def kv_tile_dma(which):
        srdr, off, slot, w = (sK, sKoff, sKslot, sKw) if which == "k" else (sV, sVoff, sVslot, sVw)
        it = []
        for i in range(4):
            ld = f"buffer_load_dwordx4 v{vL16}, s[{srdr}:{srdr+3}], s{off} offen offset:{i*1024} lds"
            it.append([f"s_add_u32 m0, s{w}, s{slot}", f"s_add_u32 s{slot}, s{slot}, 16384", ld] if i == 0 else [ld])
        it.append([f"s_add_u32 s{off}, s{off}, 16384", f"s_and_b32 s{slot}, s{slot}, 0xffff"])
        return it
    def qstage(mode, vm):
        adv = [f"v_add_u32 v{r}, s{sDelta}, v{r}" for r in xaddr + waddr]
        items = [(r, 4, 0, 24) for r in qreads(1, 1)]
        if mode != "last":
            items += [(a, 4, 25, 31) for a in adv]
            items += [([f"s_add_u32 s{sStep}, s{sStep}, 1", f"s_cmp_eq_u32 s{sStep}, 2"], 8, 31, 31)]
            items += [([f"s_cselect_b32 s{sDelta}, {-2*49152 & 0xffffffff}, s{sEvB}", f"s_cselect_b32 s{sStep}, -1, s{sStep}"], 8, 31, 31)]
        p.e("s_waitcnt lgkmcnt(0)")
        p.ext(interleave(qmm(0), pack_gaps(32, items)))
        if mode == "last":
            p.e("s_waitcnt lgkmcnt(0)")
            p.ext(qmm(1))
            return
        p.e(f"s_waitcnt vmcnt({vm}) lgkmcnt(0)")
        p.e("s_barrier")
        items = [(r, 4, 0, 26) for r in qreads(0, 0)]
        if mode == "q": dm = q_dma()
        elif mode == "k":
            dm = [[f"s_lshl_b32 s{sKoff}, s{sWave}, 12", f"s_mov_b32 s{sKslot}, 0", f"s_add_u32 s{sKw}, s{sKoff}, {KB}"]]
            for _ in range(4): dm += kv_tile_dma("k")
        else:
            dm = [[f"s_lshl_b32 s{sVoff}, s{sWave}, 12", f"s_mov_b32 s{sVslot}, 0", f"s_add_u32 s{sVw}, s{sVoff}, {VB}"]]
            for _ in range(3): dm += kv_tile_dma("v")
        fill = pack_gaps(32, items)
        spread(fill, dm, 0, 32)
        p.ext(interleave(qmm(1), fill))

    p.e("s_waitcnt vmcnt(24)")
    p.e("s_barrier")
    stamp(p, opt, 1)
    p.ext(qreads(0, 0))
    p.e(f"s_mov_b32 s{sCnt}, 5")
    p.e(".p2align 5")
    p.label("k2_qloop")
    qstage("q", 12)
    p.e(f"s_sub_u32 s{sCnt}, s{sCnt}, 1"); p.e(f"s_cmp_lg_u32 s{sCnt}, 0"); p.e("s_cbranch_scc1 k2_qloop")
    qstage("k", 12)
    qstage("v", 16)
    qstage("last", 0)
    stamp(p, opt, 2)
    p.e(f"s_mov_b32 s{sT}, {QSCALE:#x}")
    p.e(f"v_lshlrev_b32 v{vKa}, 4, v{vLane}")
    p.e(f"v_add_u32 v{vVa}, {VB}, v{vKa}")
    p.e(f"v_add_u32 v{vKa}, {KB}, v{vKa}")
    p.e(f"v_mov_b32 v{vNEG}, 0xff800000")
    for i in range(4): p.e(f"v_mov_b32 v{ONES+i}, 0x3f803f80")
    for i in range(4): p.e(f"v_mov_b32 v{vNegm[i]}, 0")
    for qb in range(4):
        for t in range(4):
            b = qacc(qb, 2 * t).b
            for r in range(8): p.e(f"v_mul_f32 v{b+r}, s{sT}, v{b+r}")
            for r in range(4): p.e(f"v_cvt_pk_bf16_f32 {Q(qb,t).r(r)}, v{b+2*r}, v{b+2*r+1}")
    p.e("s_waitcnt vmcnt(8)")
    p.e("s_barrier")
    for i in range(8): p.e(f"ds_read_b128 {KF(i).r(0,4)}, v{vKa} offset:{i*1024}")
    for i in range(128): p.e(f"v_accvgpr_write_b32 a{i}, 0")
    for i in range(16): p.e(f"v_accvgpr_write_b32 a{192+i}, 0")
    for i in range(16): p.e(f"v_mov_b32 v{P(1,0)+i}, 0")
    for i in range(48): p.e(f"v_mov_b32 v{128+i}, 0")
    p.e(f"s_lshl_b32 s{sEvS}, s{sP}, 2"); p.e(f"s_add_u32 s{sEvS}, s{sEvS}, s{sWave}")
    p.e(f"s_mov_b32 s{sStep}, -1")
    p.e(f"s_mov_b32 s{sKr}, 16384")
    p.e(f"s_mov_b32 s{sVr}, 0")

    uid = [0]
    def small_patch():
        uid[0] += 1; lab = f"k2_nsp{uid[0]}"
        p.e(f"s_sub_u32 s{sT}, s{sStep}, s{sEvS}")
        p.e(f"s_add_u32 s{sT}, s{sT}, 1")
        p.e(f"s_cmp_lt_u32 s{sT}, 2")
        p.e(f"s_cbranch_scc0 {lab}")
        p.e(f"s_cmp_eq_u32 s{sT}, 0")
        for r in range(4): p.e(f"s_cselect_b64 s[{sM+2*r}:{sM+2*r+1}], s[{sTri+2*r}:{sTri+2*r+1}], 0")
        p.e(f"s_cselect_b64 vcc, -1, 0")
        for r in range(4):
            p.e(f"v_cndmask_b32 v{Cs(0,0)+r}, v{vNEG}, v{vNegm[2]}, s[{sM+2*r}:{sM+2*r+1}]")
            p.e(f"v_cndmask_b32 v{Cs(1,1)+r}, v{vNEG}, v{vNegm[3]}, s[{sM+2*r}:{sM+2*r+1}]")
            p.e(f"v_mov_b32 v{Cs(1,0)+r}, v{vNEG}")
            p.e(f"v_cndmask_b32 v{Cs(0,1)+r}, v{vNEG}, v{vNegm[3]}, vcc")
        p.e("s_nop 1")
        p.label(lab)
    def big_patch(e):
        uid[0] += 1; lab = f"k2_nbp{uid[0]}"
        p.e(f"s_cmp_eq_u32 s{sStep}, {31+e}")
        p.e(f"s_cbranch_scc0 {lab}")
        for hh in range(2):
            a = 2 * e + hh
            p.e(f"s_cmp_gt_u32 s{sWave}, {a}")
            p.e(f"s_cselect_b64 vcc, -1, 0")
            p.e(f"s_cmp_eq_u32 s{sWave}, {a}")
            for r in range(4): p.e(f"s_cselect_b64 s[{sM+2*r}:{sM+2*r+1}], s[{sTri+2*r}:{sTri+2*r+1}], vcc")
            for r in range(4):
                p.e(f"v_cndmask_b32 v{Cb(2*hh,0)+r}, v{vNEG}, v{vNegm[0]}, s[{sM+2*r}:{sM+2*r+1}]")
                p.e(f"v_cndmask_b32 v{Cb(2*hh+1,1)+r}, v{vNEG}, v{vNegm[1]}, s[{sM+2*r}:{sM+2*r+1}]")
                p.e(f"v_cndmask_b32 v{Cb(2*hh+1,0)+r}, v{vNEG}, v{vNegm[0]}, vcc")
            p.e(f"s_cmp_ge_u32 s{sWave}, {a}")
            p.e(f"s_cselect_b64 vcc, -1, 0")
            for r in range(4): p.e(f"v_cndmask_b32 v{Cb(2*hh,1)+r}, v{vNEG}, v{vNegm[1]}, vcc")
        p.e("s_nop 1")
        p.label(lab)

    def QK(typ, st):
        out = []
        if typ == 1:
            for kb in range(2):
                for t in range(4):
                    for qb in range(4):
                        d = S(st, 2 * qb + kb)
                        c = d if t else (Cb(kb, qb) if qb < 2 else Cs(kb, qb - 2))
                        out.append(mfma(v4(d), KF(kb * 4 + t).r(0, 4), Q(qb, t).r(0, 4), v4(c)))
        else:
            for kb in range(4):
                for t in range(4):
                    for qb in range(2):
                        d = S(st, 2 * (2 * (kb >> 1) + qb) + (kb & 1))
                        c = d if t else Cb(kb, qb)
                        out.append(mfma(v4(d), KF(kb * 4 + t).r(0, 4), Q(qb, t).r(0, 4), v4(c)))
        return out
    def PV(typ, st, fr=VF):
        out = []
        if typ == 1:
            for db in range(8):
                for qb in range(4):
                    out.append(mfma(O(qb, db).r(0, 4), fr(db).r(0, 4), v4(P(st, qb)), O(qb, db).r(0, 4)))
                if db % 2 == 1:
                    qb = db // 2
                    out.append(mfma(L(qb).r(0, 4), v4(ONES), v4(P(st, qb)), L(qb).r(0, 4)))
        else:
            for kp in range(2):
                for db in range(8):
                    for qb in range(2):
                        out.append(mfma(O(qb, db).r(0, 4), fr(kp * 8 + db).r(0, 4), v4(P(st, 2 * kp + qb)), O(qb, db).r(0, 4)))
                    if db % 4 == 3:
                        qb = db // 4
                        out.append(mfma(L(qb).r(0, 4), v4(ONES), v4(P(st, 2 * kp + qb)), L(qb).r(0, 4)))
        return out
    def adv(which):
        if which == "k": return [f"v_add_u32 v{vKa}, s{sKr}, v{vL16}", f"s_add_u32 s{sKr}, s{sKr}, 16384"], [f"s_and_b32 s{sKr}, s{sKr}, 0xffff", f"s_or_b32 s{sKr}, s{sKr}, 0"]
        return None

    def step(par, qk, pv, kread, vread, kload, vload, kadv, vadv, vm):
        cur, nxt = par, 1 - par
        m1 = QK(qk, nxt) if qk else []
        m2 = PV(pv, nxt)
        n1 = len(m1); n = n1 + len(m2)
        items = []
        if qk:
            for g in range(32):
                items.append((f"v_exp_f32 v{S(cur,0)+g}, v{S(cur,0)+g}", 8, 2 * g, 2 * g))
        nv, vo = vread
        items += [(f"ds_read_b128 {VF(i).r(0,4)}, v{vVa} offset:{vo + i*1024}", 4, 1, 25) for i in range(nv)] if qk else []
        if vadv:
            items.append(([f"v_add_u32 v{vVa}, s{sVr}, v{vL16}", f"s_add_u32 s{sVr}, s{sVr}, 16384"], 8, 27, 31))
            items.append(([f"s_and_b32 s{sVr}, s{sVr}, 0xffff"], 4, 33, 40))
        if qk:
            for k in range(16):
                items.append((f"v_cvt_pk_bf16_f32 v{P(cur,0)+k}, v{S(cur,0)+2*k}, v{S(cur,0)+2*k+1}", 4, 4 * k + 5, min(4 * k + 9, n - 1)))
        nk, ko = kread
        items += [(f"ds_read_b128 {KF(i).r(0,4)}, v{vKa} offset:{ko + i*1024}", 4, n1 + 1, n1 + 29) for i in range(nk)]
        if kadv:
            items.append(([f"s_add_u32 s{sT}, s{sKr}, {KB}", f"s_add_u32 s{sKr}, s{sKr}, 16384"], 8, n1 + 31, n1 + 33))
            items.append(([f"v_add_u32 v{vKa}, s{sT}, v{vL16}", f"s_and_b32 s{sKr}, s{sKr}, 0xffff"], 8, n1 + 34, n1 + 35))
        dm = []
        if kload: dm += kv_tile_dma("k")
        if vload: dm += kv_tile_dma("v")
        lo = 1
        stride = max(1, (n - 6) // max(1, len(dm)))
        for i, g in enumerate(dm):
            items.append((g, 8, 1 + i * stride, 1 + i * stride + stride - 1))
        fill = pack_gaps(n, items)
        p.e(f"s_waitcnt vmcnt({vm}) lgkmcnt(0)")
        p.e("s_barrier")
        return m1, m2, fill, n1

    def emit_step(par, qk, pv, kread, vread, kload, vload, kadv, vadv, vm, patch):
        p.e(f"s_add_u32 s{sStep}, s{sStep}, 1")
        if patch == "s": small_patch()
        elif patch is not None: big_patch(patch)
        m1, m2, fill, n1 = step(par, qk, pv, kread, vread, kload, vload, kadv, vadv, vm)
        body = interleave(m1, fill[:n1])
        p.ext(body)
        p.e("s_waitcnt lgkmcnt(0)")
        p.ext(interleave(m2, fill[n1:]))

    small_patch()
    p.e("s_waitcnt lgkmcnt(0)")
    p.ext(QK(1, 0))
    for i in range(8): p.e(f"ds_read_b128 {KF(i).r(0,4)}, v{vKa} offset:{8192 + i*1024}")
    p.e(f"s_add_u32 s{sT}, s{sKr}, {KB}"); p.e(f"s_add_u32 s{sKr}, s{sKr}, 16384")
    p.e(f"v_add_u32 v{vKa}, s{sT}, v{vL16}")
    for qb in range(4):
        b = S(0, 2 * qb); m = vNegm[qb]
        p.e(f"v_max3_f32 v{m}, v{b}, v{b+1}, v{b+2}")
        p.e(f"v_max3_f32 v{vT}, v{b+3}, v{b+4}, v{b+5}")
        p.e(f"v_max3_f32 v{m}, v{m}, v{b+6}, v{b+7}")
        p.e(f"v_max_f32 v{m}, v{m}, v{vT}")
        p.e(f"v_mov_b32 v{vT+1+qb}, v{m}")
    p.e("s_nop 1")
    for qb in range(4): p.e(f"v_permlane16_swap_b32 v{vNegm[qb]}, v{vT+1+qb}")
    for qb in range(4): p.e(f"v_max_f32 v{vNegm[qb]}, v{vNegm[qb]}, v{vT+1+qb}")
    for qb in range(4): p.e(f"v_mov_b32 v{vT+1+qb}, v{vNegm[qb]}")
    p.e("s_nop 1")
    for qb in range(4): p.e(f"v_permlane32_swap_b32 v{vNegm[qb]}, v{vT+1+qb}")
    for qb in range(4): p.e(f"v_max_f32 v{vNegm[qb]}, v{vNegm[qb]}, v{vT+1+qb}")
    for qb in range(4): p.e(f"v_sub_f32 v{vNegm[qb]}, 0, v{vNegm[qb]}")
    for qb in range(4):
        for r in range(8): p.e(f"v_add_f32 v{S(0,2*qb)+r}, v{vNegm[qb]}, v{S(0,2*qb)+r}")
    for kb in range(4):
        for qb in range(2):
            for r in range(4): p.e(f"v_mov_b32 v{Cb(kb,qb)+r}, v{vNegm[qb]}")
    for kb in range(2):
        for qb in range(2):
            for r in range(4): p.e(f"v_mov_b32 v{Cs(kb,qb)+r}, v{vNegm[2+qb]}")
    stamp(p, opt, 3)
    p.e(f"s_lshl_b32 s{sCnt}, s{sP}, 1"); p.e(f"s_add_u32 s{sCnt}, s{sCnt}, 1")
    p.e(".p2align 5")
    p.label("k2_loopA")
    emit_step(0, 1, 1, (8, 0), (8, 8192), True, False, False, True, 8, "s")
    emit_step(1, 1, 1, (8, 8192), (8, 0), False, True, True, False, 8, "s")
    p.e(f"s_sub_u32 s{sCnt}, s{sCnt}, 1"); p.e(f"s_cmp_lg_u32 s{sCnt}, 0"); p.e("s_cbranch_scc1 k2_loopA")
    emit_step(0, 1, 1, (16, 0), (8, 8192), True, False, True, True, 8, "s")
    emit_step(1, 2, 1, (16, 0), (8, 0), True, True, True, False, 8, 0)
    emit_step(0, 2, 1, (16, 0), (8, 8192), True, False, True, True, 12, 1)
    p.e(f"s_lshl_b32 s{sCnt}, s{sP}, 1"); p.e(f"s_sub_u32 s{sCnt}, 14, s{sCnt}")
    p.e(f"s_cmp_eq_u32 s{sCnt}, 0"); p.e("s_cbranch_scc1 k2_tail")
    p.e(".p2align 5")
    p.label("k2_loopE")
    emit_step(1, 2, 2, (16, 0), (16, 0), True, True, True, True, 12, 0)
    emit_step(0, 2, 2, (16, 0), (16, 0), True, True, True, True, 12, 1)
    p.e(f"s_sub_u32 s{sCnt}, s{sCnt}, 1"); p.e(f"s_cmp_lg_u32 s{sCnt}, 0"); p.e("s_cbranch_scc1 k2_loopE")
    p.label("k2_tail")
    p.e("s_waitcnt vmcnt(0) lgkmcnt(0)")
    p.e("s_barrier")
    for i in range(16): p.e(f"ds_read_b128 {VF(i).r(0,4)}, v{vVa} offset:{i*1024}")
    p.e(f"v_add_u32 v{vVa}, s{sVr}, v{vL16}")
    for g in range(8): p.e(f"v_exp_f32 v{S(1,0)+g}, v{S(1,0)+g}")
    p.e("s_waitcnt lgkmcnt(0)")
    m2 = PV(2, 0)
    items = [(f"ds_read_b128 {KF(i).r(0,4)}, v{vVa} offset:{i*1024}", 4, 0, 30) for i in range(16)]
    ex = [(f"v_exp_f32 v{S(1,0)+g}, v{S(1,0)+g}", 8, g - 8, g - 8) for g in range(8, 32)]
    cv = [(f"v_cvt_pk_bf16_f32 v{P(1,0)+k}, v{S(1,0)+2*k}, v{S(1,0)+2*k+1}", 4, max(0, 2 * k - 5), 35) for k in range(16)]
    p.ext(interleave(m2, pack_gaps(36, ex + cv + items, cap=12)))
    p.e("s_waitcnt lgkmcnt(0)")
    p.e("s_nop 0")
    p.ext(PV(2, 1, KF))
    stamp(p, opt, 4)
    p.nop(8)
    for qb in range(4): p.e(f"v_accvgpr_read_b32 v{32+qb}, {L(qb).r(0)}")
    for qb in range(4): p.e(f"v_rcp_f32 v{36+qb}, v{32+qb}")
    p.e(f"s_lshl_b32 s{sT}, s{sWave}, 18"); p.e(f"s_lshl_b32 s{sT2}, s{sH}, 12"); p.e(f"s_add_u32 s{sT}, s{sT}, s{sT2}")
    p.e(f"s_lshl_b32 s{sT2}, s{sP}, 20")
    p.e(f"s_add_u32 s{sKoff}, s{sT}, s{sT2}")
    p.e(f"s_sub_u32 s{sVoff}, {15 << 20}, s{sT2}"); p.e(f"s_add_u32 s{sVoff}, s{sVoff}, s{sT}")
    k = 0
    for qb in range(4):
        so = sVoff if qb < 2 else sKoff
        for t in range(4):
            tb = 40 + (k % 4) * 12; k += 1
            for r in range(8): p.e(f"v_accvgpr_read_b32 v{tb+r}, a{O(qb,2*t).b + r}")
            for r in range(8): p.e(f"v_mul_f32 v{tb+r}, v{36+qb}, v{tb+r}")
            for r in range(4): p.e(f"v_cvt_pk_bf16_f32 v{tb+8+r}, v{tb+2*r}, v{tb+2*r+1}")
            p.e(f"buffer_store_dwordx4 v[{tb+8}:{tb+11}], v{vL16}, s[{sC}:{sC+3}], s{so} offen offset:{t*1024}{opt.get('ctxst','')}")
        if qb % 2 == 0: p.e(f"s_add_u32 s{so}, s{so}, {1 << 17}")
    stamp(p, opt, 5)
    stamp_flush(p, opt, 1, 6, sWave)
    p.label("k2_end")
    p.e("s_endpgm")
    return descriptor(name, 512, 256, 102)

def gen_k3(p, opt):
    name = "k3_oproj_kernel"
    header(p, name)
    sXB, sXA, sWB, sWA, sO = 28, 32, 36, 40, 44
    sWave, sRT, sCT, sT, sT2, sXo, sWo, sAo, sL = range(48, 57)
    vLane, vG, vI = 1, 3, 4
    voffW = [5, 6, 7, 8]; voffX = [9, 10, 11, 12]; voffXA = [13, 14, 15, 16]; waddr = [17, 18, 19, 20]
    vT = 21
    NA = 4 if not opt.get("noA") else 0
    NS = NA + 32
    def acc(isA, qb, mb): return Reg("v", (128 if isA else 64) + (qb * 4 + mb) * 4)
    def XF(s, qb): return Reg("a", (s % 8) * 16 + qb * 4)
    def WF(s, mb): return Reg("a", 128 + (s % 2) * 16 + mb * 4)
    stamp(p, opt, 0)
    common_prologue(p, "k3_end", sWave, vLane, vT)
    p.e(f"s_and_b32 s{sRT}, s2, 7"); p.e(f"s_lshl_b32 s{sRT}, s{sRT}, 2")
    p.e(f"s_lshr_b32 s{sT}, s2, 3"); p.e(f"s_and_b32 s{sT}, s{sT}, 3"); p.e(f"s_add_u32 s{sRT}, s{sRT}, s{sT}")
    p.e(f"s_lshr_b32 s{sCT}, s2, 5")
    p.e(f"v_lshrrev_b32 v{vG}, 4, v{vLane}")
    p.e(f"v_and_b32 v{vI}, 15, v{vLane}")
    p.e(f"v_lshrrev_b32 v{vT}, 3, v{vLane}")
    p.e(f"v_bfe_u32 v{vT+1}, v{vLane}, 4, 2")
    p.e(f"v_bfe_u32 v{vT+2}, v{vLane}, 1, 2")
    p.e(f"v_xor_b32 v{vT+1}, v{vT+1}, v{vT+2}")
    p.e(f"v_and_b32 v{vT+2}, 1, v{vLane}")
    p.e(f"v_lshl_add_u32 v{vT+1}, v{vT+1}, 1, v{vT+2}")
    p.e(f"v_lshlrev_b32 v{vT+1}, 4, v{vT+1}")
    p.e(f"v_lshl_add_u32 v{voffW[0]}, v{vT}, 10, v{vT+1}")
    for i in range(1, 4): p.e(f"v_add_u32 v{voffW[i]}, {i*(8192-1024)}, v{voffW[0]}")
    p.e(f"v_lshlrev_b32 v{voffX[0]}, 4, v{vLane}")
    for i in range(1, 4): p.e(f"v_add_u32 v{voffX[i]}, {i*131072}, v{voffX[0]}")
    p.e(f"v_lshlrev_b32 v{voffXA[0]}, 3, v{vLane}")
    for i in range(1, 4): p.e(f"v_add_u32 v{voffXA[i]}, {i*16384}, v{voffXA[0]}")
    p.e("s_waitcnt lgkmcnt(0)")
    srd(p, sXB, P_WS, CTX, 16 << 20)
    srd(p, sXA, P_WS, OA, 2 << 20)
    p.e(f"s_lshl_b32 s{sT}, s{sCT}, 7")
    p.e(f"s_sub_u32 s{sT2}, {4096*1024}, s{sT}")
    srd(p, sWB, P_WO, f"s{sT}", f"s{sT2}")
    p.e(f"s_sub_u32 s{sT2}, {512*1024}, s{sT}")
    srd(p, sWA, P_WO_A, f"s{sT}", f"s{sT2}")
    srd(p, sO, P_OUT, 0, 2048 * 2048)
    p.e(f"s_lshl_b32 s{sXo}, s{sRT}, 19"); p.e(f"s_lshl_b32 s{sT}, s{sWave}, 15"); p.e(f"s_add_u32 s{sXo}, s{sXo}, s{sT}")
    p.e(f"s_mov_b32 s{sL}, s{sT}")
    p.e(f"s_lshl_b32 s{sAo}, s{sRT}, 16"); p.e(f"s_lshl_b32 s{sT}, s{sWave}, 12"); p.e(f"s_add_u32 s{sAo}, s{sAo}, s{sT}")
    p.e(f"s_lshl_b32 s{sWo}, s{sWave}, 17")

    def ldX(s):
        if s >= NS: return []
        if s < NA:
            out = []
            for qb in range(4):
                for hh in range(2):
                    out.append([f"buffer_load_dwordx2 {XF(s,qb).r(2*hh,2)}, v{voffXA[qb]}, s[{sXA}:{sXA+3}], s{sAo} offen offset:{s*1024+hh*512}"])
            return out
        b = s - NA
        out = [[f"buffer_load_dwordx4 {XF(s,qb).r(0,4)}, v{voffX[qb]}, s[{sXB}:{sXB+3}], s{sXo} offen offset:{(b%4)*1024}"] for qb in range(4)]
        if b % 4 == 3: out[-1].append(f"s_add_u32 s{sXo}, s{sXo}, 4096")
        return out
    def ldW(s):
        if s >= NS: return []
        sr = sWA if s < NA else sWB
        out = []
        pre = []
        if s == NA: pre.append(f"s_lshl_b32 s{sWo}, s{sWave}, 20")
        pre += [f"s_add_u32 m0, s{sL}, {(s%8)*4096}", "s_nop 0"]
        for i in range(4):
            ld = f"buffer_load_dwordx4 v{voffW[i]}, s[{sr}:{sr+3}], s{sWo} offen offset:{i*1024} lds"
            out.append(pre + [ld] if i == 0 else [ld])
        out[-1].append(f"s_add_u32 s{sWo}, s{sWo}, 32768")
        return out
    nX = lambda s: 0 if s >= NS else (8 if s < NA else 4)
    nW = lambda s: 0 if s >= NS else 4
    def rdW(s):
        if s >= NS: return []
        out = []
        for mb in range(4):
            for jh in range(2):
                out.append(f"ds_read_b64_tr_b16 {WF(s,mb).r(2*jh,2)}, v{waddr[mb]} offset:{(s%8)*4096 + jh*2048}")
        return out
    zero = [f"v_mov_b32 v{i}, 0" for i in range(64, 192)]
    k = 0
    for s in range(8):
        for g in ldW(s) + (ldX(s) if s < 7 else []):
            p.ext(g); p.ext(zero[k:k + 2]); k += 2
    p.ext(zero[k:])
    p.e(f"v_lshrrev_b32 v{vT}, 2, v{vI}")
    p.e(f"v_lshl_add_u32 v{vT}, v{vG}, 2, v{vT}")
    p.e(f"v_bfe_u32 v{vT+1}, v{vT}, 1, 2")
    p.e(f"v_lshlrev_b32 v{vT}, 7, v{vT}")
    p.e(f"v_lshl_add_u32 v{vT}, v{vT+1}, 5, v{vT}")
    p.e(f"v_and_b32 v{vT+1}, 3, v{vI}")
    p.e(f"v_lshl_add_u32 v{vT}, v{vT+1}, 3, v{vT}")
    p.e(f"v_add_u32 v{waddr[0]}, s{sL}, v{vT}")
    for b in range(1, 4): p.e(f"v_xor_b32 v{waddr[b]}, {32*b}, v{waddr[0]}")
    after = lambda s, lastX, lastW: sum(nX(t) for t in range(s, lastX + 1)) + sum(nW(t) for t in range(s + 1, lastW + 1))
    p.e(f"s_waitcnt vmcnt({min(63, after(0, 6, 7))})")
    stamp(p, opt, 1)
    p.ext(rdW(0))
    for s in range(NS):
        if s + 1 < NS: cnt = after(s + 1, s + 6, s + 7)
        else: cnt = 0
        p.e(f"s_waitcnt vmcnt({min(63, cnt)}) lgkmcnt(0)")
        isA = s < NA
        mm = [mfma(acc(isA, qb, mb).r(0, 4), WF(s, mb).r(0, 4), XF(s, qb).r(0, 4), acc(isA, qb, mb).r(0, 4)) for qb in range(4) for mb in range(4)]
        fill = [[] for _ in range(16)]
        for i, r in enumerate(rdW(s + 1)): fill[i].append(r)
        spread(fill, ldX(s + 7) + ldW(s + 8), 0, 16)
        p.ext(interleave(mm, fill))
    stamp(p, opt, 2)
    p.e(f"v_lshlrev_b32 v{vT}, 4, v{vLane}")
    p.e(f"v_add_u32 v{vT}, s{sL}, v{vT}")
    p.nop(6)
    for isA in ((0, 1) if NA else (0,)):
        for qb in range(4):
            for mb in range(4):
                p.e(f"ds_write_b128 v{vT}, {acc(isA,qb,mb).r(0,4)} offset:{isA*16384 + (qb*4+mb)*1024}")
    p.e(f"s_lshl_b32 s{sT}, s{sWave}, 12")
    p.e(f"v_lshlrev_b32 v{vT+1}, 10, v{vG}")
    p.e(f"v_lshl_add_u32 v{vT+1}, v{vI}, 4, v{vT+1}")
    p.e(f"v_add_u32 v{vT+1}, s{sT}, v{vT+1}")
    p.e(f"v_add_u32 v{vT+2}, 0x10000, v{vT+1}")
    p.e(f"s_lshl_b32 s{sT}, s{sRT}, 17"); p.e(f"s_lshl_b32 s{sT2}, s{sWave}, 15"); p.e(f"s_add_u32 s{sT}, s{sT}, s{sT2}")
    p.e(f"s_lshl_b32 s{sT2}, s{sCT}, 7"); p.e(f"s_add_u32 s{sT}, s{sT}, s{sT2}")
    p.e(f"v_lshlrev_b32 v{vT+3}, 11, v{vI}")
    p.e(f"v_lshl_add_u32 v{vT+3}, v{vG}, 5, v{vT+3}")
    p.e("s_waitcnt lgkmcnt(0)")
    p.e("s_barrier")
    for isA in ((0, 1) if NA else (0,)):
        base = 64 + isA * 64
        for w in range(4):
            for g in range(4):
                va = vT + 1 + (w >> 1)
                p.e(f"ds_read_b128 v[{base+w*16+g*4}:{base+w*16+g*4+3}], v{va} offset:{(w&1)*32768 + isA*16384 + g*256}")
    for isA in ((0, 1) if NA else (0,)):
        base = 64 + isA * 64
        p.e(f"s_waitcnt lgkmcnt({15 if (NA and not isA) else 0})")
        if NA and not isA: p.e("s_waitcnt lgkmcnt(15)")
        for r in range(16): p.e(f"v_add_f32 v{base+r}, v{base+r}, v{base+16+r}")
        for r in range(16): p.e(f"v_add_f32 v{base+32+r}, v{base+32+r}, v{base+48+r}")
        for r in range(16): p.e(f"v_add_f32 v{base+r}, v{base+r}, v{base+32+r}")
        for r in range(8): p.e(f"v_cvt_pk_bf16_f32 v{base+16+r}, v{base+2*r}, v{base+2*r+1}")
        co = 0 if isA else 1024
        p.e(f"buffer_store_dwordx4 v[{base+16}:{base+19}], v{vT+3}, s[{sO}:{sO+3}], s{sT} offen offset:{co}")
        p.e(f"buffer_store_dwordx4 v[{base+20}:{base+23}], v{vT+3}, s[{sO}:{sO+3}], s{sT} offen offset:{co+16}")
    stamp(p, opt, 3)
    stamp_flush(p, opt, 2, 4, sWave)
    p.label("k3_end")
    p.e("s_endpgm")
    return descriptor(name, 192 + 160, 192)

def build(opt, kernels=("k1",)):
    p = Prog()
    heads = {"k1": "; @launch kernel=k1_proj_kernel grid=(256,1,1) block=(256,1,1) lds=163840",
             "k2": "; @launch kernel=k2_attn_kernel grid=(256,1,1) block=(256,1,1) lds=163840",
             "k3": "; @launch kernel=k3_oproj_kernel grid=(256,1,1) block=(256,1,1) lds=163840"}
    for k in kernels: p.e(heads[k])
    p.e('.amdgcn_target "amdgcn-amd-amdhsa--gfx950"')
    p.e(".text")
    desc = []
    for k in kernels:
        desc += globals()["gen_" + k](p, opt)
    probs = check_prog(p.lines)
    for x in probs: print("HAZARD", x)
    p.e('.section .rodata,"a"')
    p.ext(desc)
    return p.text()

if __name__ == "__main__":
    out = sys.argv[1] if len(sys.argv) > 1 else "cur.s"
    ks = sys.argv[2].split(",") if len(sys.argv) > 2 else ["k1"]
    opt = dict(x.split("=") if "=" in x else (x, 1) for x in sys.argv[3:])
    for k in opt:
        if isinstance(opt[k], str): opt[k] = opt[k].replace("+", " ")
    open(out, "w").write(build(opt, ks))
```
